```python
import torch

def _softmax(x, axis=-1):
    return torch.softmax(x, dim=axis)
def _gelu(x):
    return torch.nn.functional.gelu(x, approximate="tanh")
def _silu(x):
    return torch.nn.functional.silu(x)
def _sigmoid(x):
    return torch.sigmoid(x)
def _layernorm(x, axis=-1, eps=1e-5):
    m = x.mean(dim=axis, keepdim=True)
    v = x.var(dim=axis, keepdim=True, unbiased=False)
    return (x - m) / torch.sqrt(v + eps)
def _scatter_add(tgt, idx, src, axis=0):
    return tgt.clone().index_add_(axis, idx, src)
def _segment_sum(src, seg, n):
    out = torch.zeros((n,) + src.shape[1:], dtype=src.dtype)
    return out.index_add_(0, seg, src)
def _pad(x, pw):
    flat = tuple(v for pair in reversed(pw) for v in pair)
    return torch.nn.functional.pad(x, flat)

kernel_name = 'gated_mix__ssm_conv_s5__glu_gated_bilinear__prompt'

def setup_inputs():

    _w = (lambda a: (lambda t: t.to(torch.bfloat16) if t.is_floating_point() else t)(torch.as_tensor(a)))
    def _A_setup():
        B, S, D = 1, 2048, 512
        P = D
        Lambda_re = -0.5 * (lambda _x: torch.exp(torch.as_tensor(_x)))((lambda *s: torch.randn(*s, dtype=torch.bfloat16) * 0.2)(P))
        Lambda_im = (lambda *s: torch.randn(*s, dtype=torch.bfloat16) * 0.4)(P) * 1.0
        B_re = (lambda *s: torch.randn(*s, dtype=torch.bfloat16) * 0.2)(P, D) * (D ** -0.5)
        B_im = (lambda *s: torch.randn(*s, dtype=torch.bfloat16) * 0.2)(P, D) * (D ** -0.5)
        C_re = (lambda *s: torch.randn(*s, dtype=torch.bfloat16) * 0.2)(D, P) * (P ** -0.5)
        C_im = (lambda *s: torch.randn(*s, dtype=torch.bfloat16) * 0.2)(D, P) * (P ** -0.5)
        log_dt = (lambda *s: torch.randn(*s, dtype=torch.bfloat16) * 0.2)(P) * 0.3 - 2.0
        Dskip = (lambda *s: torch.randn(*s, dtype=torch.bfloat16) * 0.05)(D)
        return {
            "x": _w((lambda *s: torch.randn(*s, dtype=torch.bfloat16) * 0.05)(B, S, D)),
            "Lambda_re": _w(Lambda_re),
            "Lambda_im": _w(Lambda_im),
            "B_re": _w(B_re),
            "B_im": _w(B_im),
            "C_re": _w(C_re),
            "C_im": _w(C_im),
            "log_dt": _w(log_dt),
            "Dskip": _w(Dskip),
        }
    _A_in = _A_setup()

    def _B_setup():
        B, S, D, F = 1, 2048, 512, 1376
        return {
            "x": _w((lambda *s: torch.randn(*s, dtype=torch.bfloat16) * 0.05)(B, S, D)),
            "w_gate": _w((lambda *s: torch.randn(*s, dtype=torch.bfloat16) * 0.8)(D, F) * (D ** -0.5)),
            "w_up": _w((lambda *s: torch.randn(*s, dtype=torch.bfloat16) * 0.8)(D, F) * (D ** -0.5)),
            "w_down": _w((lambda *s: torch.randn(*s, dtype=torch.bfloat16) * 0.8)(F, D) * (F ** -0.5)),
        }
    _B_in = _B_setup()

    return {
        "A_x": _A_in["x"],
        "A_Lambda_re": _A_in["Lambda_re"],
        "A_Lambda_im": _A_in["Lambda_im"],
        "A_B_re": _A_in["B_re"],
        "A_B_im": _A_in["B_im"],
        "A_C_re": _A_in["C_re"],
        "A_C_im": _A_in["C_im"],
        "A_log_dt": _A_in["log_dt"],
        "A_Dskip": _A_in["Dskip"],
        "B_x": _B_in["x"],
        "B_w_gate": _B_in["w_gate"],
        "B_w_up": _B_in["w_up"],
        "B_w_down": _B_in["w_down"],
        "gate_w": _w((lambda *s: torch.randn(*s, dtype=torch.bfloat16) * 0.05)(512) * 16.0),
    }

def reference(A_x, A_Lambda_re, A_Lambda_im, A_B_re, A_B_im, A_C_re, A_C_im, A_log_dt, A_Dskip, B_x, B_w_gate, B_w_up, B_w_down, gate_w):
    def _A_ref(x, Lambda_re, Lambda_im, B_re, B_im, C_re, C_im, log_dt, Dskip):
        Bsz, L, H = x.shape
        Lam = Lambda_re + 1j * Lambda_im
        Bmat = B_re + 1j * B_im
        Cmat = C_re + 1j * C_im
        dt = torch.exp(log_dt)
        Lam_bar = torch.exp(dt * Lam)
        B_bar = ((Lam_bar - 1.0) / Lam)[:, None] * Bmat
        Bu = torch.einsum("bld,pd->blp", x + 0j, B_bar)
        h = torch.zeros_like(Bu[:, 0, :])
        hs = []
        for t in range(L):
            h = Lam_bar[None, :] * h + Bu[:, t, :]
            hs.append(h)
        hseq = torch.stack(hs, 1)
        y = 2.0 * torch.einsum("blp,dp->bld", hseq, Cmat).real + x * Dskip[None, None, :]
        return y

    def _B_ref(x, w_gate, w_up, w_down):
        g = torch.einsum("bsd,df->bsf", x, w_gate)
        u = torch.einsum("bsd,df->bsf", x, w_up)
        h = g * u
        return torch.einsum("bsf,fd->bsd", h, w_down)

    x = A_x
    g = _sigmoid((x * gate_w).sum(-1, keepdims=True))
    a = _A_ref(x, A_Lambda_re, A_Lambda_im, A_B_re, A_B_im, A_C_re, A_C_im, A_log_dt, A_Dskip)
    b = _B_ref(x, B_w_gate, B_w_up, B_w_down)
    return g * a + (1 - g) * b
```

```python
import re

REG_RE = re.compile(r'^(-|abs\(|\|)?([vsa])(\d+|\[(\d+):(\d+)\])\)?\|?$')

def parse_reg(tok):
    tok = tok.strip()
    if tok in ('vcc',):
        return {('s', 'vcc_lo'), ('s', 'vcc_hi')}
    if tok in ('vcc_lo', 'vcc_hi'):
        return {('s', tok)}
    if tok == 'exec':
        return {('s', 'exec_lo'), ('s', 'exec_hi')}
    if tok in ('exec_lo', 'exec_hi'):
        return {('s', tok)}
    if tok == 'm0':
        return {('s', 'm0')}
    t = tok
    if t.startswith('-'):
        t = t[1:]
    if t.startswith('abs(') and t.endswith(')'):
        t = t[4:-1]
    if t.startswith('|') and t.endswith('|'):
        t = t[1:-1]
    m = re.match(r'^([vsa])(\d+)$', t)
    if m:
        return {(m.group(1), int(m.group(2)))}
    m = re.match(r'^([vsa])\[(\d+):(\d+)\]$', t)
    if m:
        return {(m.group(1), i) for i in range(int(m.group(2)), int(m.group(3)) + 1)}
    return set()

TRANS = ('v_exp_f32', 'v_log_f32', 'v_rcp_f32', 'v_rsq_f32', 'v_sqrt_f32', 'v_sin_f32', 'v_cos_f32',
         'v_rcp_iflag_f32', 'v_exp_f16', 'v_log_f16', 'v_rcp_f16')

class Ins:
    __slots__ = ('text', 'mn', 'ops', 'mods', 'kind', 'wr', 'rd', 'srcA', 'srcB', 'srcC', 'passes',
                 'is_trans', 'is_dpp', 'is_wide_store', 'store_data', 'lds_dma', 'nop', 'opsel', 'sgpr_rd_const', 'lanesel')

def split_ops(s):
    out, depth, cur = [], 0, ''
    for ch in s:
        if ch in '[(':
            depth += 1
        if ch in '])':
            depth -= 1
        if ch == ',' and depth == 0:
            out.append(cur.strip()); cur = ''
        else:
            cur += ch
    if cur.strip():
        out.append(cur.strip())
    return out

def base_mn(mn):
    for suf in ('_e32', '_e64', '_dpp', '_sdwa'):
        if mn.endswith(suf):
            return mn[:-len(suf)]
    return mn

def parse_ins(text):
    t = text.split(';')[0].strip()
    I = Ins()
    I.text = text
    parts = t.split(None, 1)
    mn = parts[0]
    rest = parts[1] if len(parts) > 1 else ''
    ops = split_ops(rest)
    mods = []
    if ops:
        lastp = ops[-1].split()
        ops[-1] = lastp[0]
        mods = lastp[1:]
    I.mn = base_mn(mn); I.ops = ops; I.mods = mods
    I.wr = set(); I.rd = set(); I.srcA = set(); I.srcB = set(); I.srcC = set()
    I.passes = 0; I.is_trans = False; I.is_dpp = False; I.is_wide_store = False; I.store_data = set()
    I.lds_dma = False; I.nop = 1; I.opsel = False; I.sgpr_rd_const = set(); I.lanesel = set()
    m = I.mn
    R = [parse_reg(o) for o in ops]
    modstr = ' '.join(mods)
    if m == 's_nop':
        I.kind = 'nop'; I.nop = int(ops[0], 0) + 1
    elif m.startswith('v_mfma'):
        I.kind = 'mfma'
        I.wr = R[0]; I.srcA = R[1]; I.srcB = R[2]; I.srcC = R[3]
        I.rd = R[1] | R[2] | R[3]
        if '32x32x16' in m or '32x32x8' in m or '32x32x32_i8' in m:
            I.passes = 8
        elif '16x16x32' in m or '16x16x16' in m:
            I.passes = 4
        else:
            raise ValueError('unknown mfma ' + m)
    elif m.startswith('v_'):
        I.kind = 'valu'
        I.is_trans = m in TRANS
        I.is_dpp = mn.endswith('_dpp') or any(x.startswith(('row_', 'quad_perm', 'wave_', 'bank_mask', 'row_mask')) for x in mods)
        I.opsel = ('op_sel' in modstr and not m.startswith('v_pk_')) or mn.endswith('_sdwa') or 'dst_sel' in modstr
        if m.startswith('v_cmpx'):
            I.wr = R[0] | parse_reg('exec'); I.rd = set().union(*R[1:])
        elif m.startswith('v_cmp'):
            I.wr = R[0]; I.rd = set().union(*R[1:])
        elif m in ('v_add_co_u32', 'v_sub_co_u32', 'v_subrev_co_u32', 'v_addc_co_u32', 'v_subb_co_u32', 'v_div_scale_f32', 'v_mad_u64_u32'):
            I.wr = R[0] | R[1]; I.rd = set().union(*R[2:])
        elif m in ('v_permlane32_swap_b32', 'v_permlane16_swap_b32', 'v_swap_b32'):
            I.wr = R[0] | R[1]; I.rd = R[0] | R[1]
        elif m in ('v_readlane_b32',):
            I.wr = R[0]; I.rd = R[1] | R[2]; I.lanesel = R[2]
        elif m in ('v_writelane_b32',):
            I.wr = R[0]; I.rd = R[0] | R[1] | R[2]; I.lanesel = R[2]
        elif m == 'v_nop':
            I.kind = 'nop'
        else:
            I.wr = R[0]; I.rd = set().union(*R[1:]) if len(R) > 1 else set()
            if m.startswith(('v_fmac', 'v_pk_fmac', 'v_dot2c', 'v_mac')) or I.is_dpp or I.opsel:
                I.rd |= R[0]
            if m == 'v_cndmask_b32' and len(ops) == 3:
                I.rd |= parse_reg('vcc')
            if m == 'v_div_fmas_f32':
                I.rd |= parse_reg('vcc')
        I.sgpr_rd_const = {r for r in I.rd if r[0] == 's'}
    elif m.startswith('buffer_') or m.startswith('global_') or m.startswith('flat_'):
        I.kind = 'vmem'
        lds = 'lds' in mods or m.startswith('global_load_lds')
        I.lds_dma = lds
        if m in ('buffer_wbl2', 'buffer_inv'):
            pass
        elif m.startswith('buffer_load'):
            if lds:
                I.rd = set().union(*R) | {('s', 'm0')}
            else:
                I.wr = R[0]; I.rd = set().union(*R[1:])
        elif m.startswith('buffer_store'):
            I.rd = set().union(*R); I.store_data = R[0]
            I.is_wide_store = 'x3' in m or 'x4' in m
        elif m.startswith('buffer_atomic'):
            I.rd = set().union(*R)
            if 'sc0' in mods:
                I.wr = R[0]
        elif m.startswith('global_load_lds'):
            I.rd = set().union(*R) | {('s', 'm0')}
        elif m.startswith('global_load'):
            I.wr = R[0]; I.rd = set().union(*R[1:])
        elif m.startswith('global_store'):
            I.rd = set().union(*R); I.store_data = R[1]
            I.is_wide_store = 'x3' in m or 'x4' in m
        elif m.startswith('global_atomic'):
            if 'sc0' in mods:
                I.wr = R[0]; I.rd = set().union(*R[1:])
            else:
                I.rd = set().union(*R)
        else:
            raise ValueError('unknown vmem ' + text)
    elif m.startswith('ds_'):
        I.kind = 'ds'
        if m.startswith(('ds_read', 'ds_bpermute', 'ds_permute', 'ds_swizzle')) or '_rtn' in m:
            I.wr = R[0]; I.rd = set().union(*R[1:])
        else:
            I.rd = set().union(*R)
        if 'addtid' in m:
            I.rd |= {('s', 'm0')}; I.lds_dma = True
    elif m.startswith('s_'):
        I.kind = 'salu'
        if m.startswith(('s_cmp', 's_cbranch', 's_branch', 's_waitcnt', 's_barrier', 's_endpgm', 's_setprio', 's_sleep', 's_bitcmp', 's_setreg', 's_sethalt')):
            I.rd = set().union(*R) if R else set()
        elif m.startswith(('s_load', 's_buffer_load', 's_memtime', 's_memrealtime', 's_atomic')):
            I.kind = 'smem'
            I.wr = R[0]; I.rd = set().union(*R[1:]) if len(R) > 1 else set()
        elif 'saveexec' in m:
            I.wr = R[0] | parse_reg('exec'); I.rd = R[1] | parse_reg('exec')
        else:
            I.wr = R[0]; I.rd = set().union(*R[1:]) if len(R) > 1 else set()
    else:
        raise ValueError('unknown instruction ' + text)
    return I

VCCEXEC = parse_reg('vcc') | parse_reg('exec')
EXEC = parse_reg('exec')

def need_states(P, C):
    n = 0
    vgpr = lambda s: {r for r in s if r[0] in 'va'}
    sgpr = lambda s: {r for r in s if r[0] == 's'}
    if P.kind == 'valu':
        pw_v = vgpr(P.wr); pw_s = sgpr(P.wr)
        if C.kind == 'mfma':
            if pw_v & C.rd: n = max(n, 2)
            if pw_s & EXEC: n = max(n, 4)
        if C.kind == 'vmem' and (pw_s & C.rd): n = max(n, 5)
        if C.kind == 'valu':
            if pw_s & C.lanesel: n = max(n, 4)
            if pw_s & C.sgpr_rd_const: n = max(n, 2)
            if C.mn == 'v_div_fmas_f32' and (pw_s & parse_reg('vcc')): n = max(n, 4)
            if C.is_dpp and (pw_v & C.rd): n = max(n, 2)
            if C.is_dpp and (pw_s & EXEC): n = max(n, 5)
            if C.mn in ('v_readlane_b32', 'v_readfirstlane_b32') and (pw_v & C.rd): n = max(n, 1)
            if C.mn in ('v_readlane_b32', 'v_readfirstlane_b32', 'v_writelane_b32') and (pw_s & EXEC): n = max(n, 4)
            if C.mn.startswith('v_permlane'):
                if pw_v & C.rd: n = max(n, 2)
                if pw_s & EXEC: n = max(n, 4)
            if P.is_trans and not C.is_trans and (pw_v & C.rd): n = max(n, 1)
            if P.is_trans and C.is_trans and (pw_v & C.rd): n = max(n, 1)
            if P.opsel and (pw_v & (C.rd | C.wr)): n = max(n, 1)
        if C.kind in ('salu', 'smem') and (pw_s & C.rd):
            n = max(n, 1)
        if P.is_trans and C.kind in ('vmem', 'ds', 'mfma') and (pw_v & C.rd): n = max(n, 2 if C.kind == 'mfma' else 1)
    if P.kind == 'salu':
        if ('s', 'm0') in P.wr and C.lds_dma: n = max(n, 1)
    if P.kind == 'vmem' and P.is_wide_store:
        if C.kind == 'valu' and (P.store_data & C.wr): n = max(n, 2)
        elif C.kind in ('vmem', 'ds', 'mfma') and (P.store_data & C.wr): n = max(n, 1)
    if P.kind == 'mfma':
        ps = P.passes
        D = P.wr
        if C.kind == 'mfma':
            if D & C.srcC:
                if C.srcC == D and C.passes == ps:
                    n = max(n, 2 if ps == 2 else 0)
                else:
                    n = max(n, {2: 4, 4: 6, 8: 10, 16: 18}[ps])
            if D & (C.srcA | C.srcB): n = max(n, {2: 5, 4: 8, 8: 12, 16: 20}[ps])
            if (D & C.wr) and not (D & C.srcC):
                n = max(n, {2: 5, 4: 8, 8: 12, 16: 20}[ps])
        elif C.kind in ('valu', 'vmem', 'ds'):
            if D & (C.rd | C.wr): n = max(n, {2: 5, 4: 8, 8: 12, 16: 20}[ps])
            if C.kind == 'valu' and (P.srcC & C.wr): n = max(n, {2: 1, 4: 3, 8: 7, 16: 15}[ps])
            if C.kind in ('vmem', 'ds') and (P.srcC & C.wr): n = max(n, {2: 1, 4: 3, 8: 7, 16: 15}[ps])
    return n

MAXWIN = 20

class Prog:
    def __init__(self):
        self.lines = []
    def __call__(self, s):
        for l in s.split('\n'):
            l = l.strip()
            if l:
                self.lines.append(l)
    def label(self, n):
        self.lines.append(n + ':')
    def comment(self, s):
        self.lines.append('; ' + s)

def is_ins(l):
    if l.startswith(';') or l.startswith('.') or l.endswith(':') or l.startswith('//'):
        return False
    return True

def _linear_pad(lines, verbose=False):
    out = []; outi = []
    for l in lines:
        if not is_ins(l):
            out.append(l); outi.append(None); continue
        C = parse_ins(l)
        if C.kind != 'nop':
            need = 0; d = 0; j = len(out) - 1; why = None
            while j >= 0 and d < MAXWIN:
                P = outi[j]
                if P is not None:
                    if P.mn in ('s_branch', 's_endpgm'):
                        break
                    if P.kind != 'nop':
                        r = need_states(P, C)
                        if r - d > need:
                            need = r - d; why = P.text
                    d += P.nop
                j -= 1
            if need > 0 and verbose:
                print(f'pad {need} before "{l}" due to "{why}"')
            while need > 0:
                c = min(need, 16)
                t = f's_nop {c-1}'
                out.append(t); outi.append(parse_ins(t))
                need -= c
        out.append(l); outi.append(C)
    return out

def pad_hazards(lines, verbose=False):
    lines = _linear_pad(lines, verbose)
    for it in range(200):
        ins = [parse_ins(l) if is_ins(l) else None for l in lines]
        branchers = {}
        for i, I in enumerate(ins):
            if I is not None and I.mn.startswith(('s_branch', 's_cbranch')):
                branchers.setdefault(I.ops[0], []).append(i)
        def preds(i):
            res = []; j = i - 1; labs = []
            while j >= 0 and ins[j] is None:
                if lines[j].endswith(':') and not lines[j].startswith(';'):
                    labs.append(lines[j][:-1])
                j -= 1
            if j >= 0 and ins[j].mn not in ('s_branch', 's_endpgm'):
                res.append(j)
            for lab in labs:
                res.extend(branchers.get(lab, []))
            return res
        cand = set()
        for i, l in enumerate(lines):
            if l.endswith(':') and not l.startswith(';') and l[:-1] in branchers:
                cnt = 0; j = i + 1
                while j < len(lines) and cnt < MAXWIN + 2:
                    if ins[j] is not None:
                        cand.add(j); cnt += 1
                    j += 1
        found = None
        for i in sorted(cand):
            C = ins[i]
            if C.kind == 'nop':
                continue
            need = 0; why = None
            stack = [(p, 0) for p in preds(i)]
            seen = {}
            while stack:
                j, d = stack.pop()
                if d >= MAXWIN:
                    continue
                if j in seen and seen[j] <= d:
                    continue
                seen[j] = d
                P = ins[j]
                if P.kind != 'nop':
                    r = need_states(P, C)
                    if r - d > need:
                        need = r - d; why = P.text
                for p in preds(j):
                    stack.append((p, d + P.nop))
            if need > 0:
                found = (i, need, why); break
        if found is None:
            return lines
        i, need, why = found
        if verbose:
            print(f'cfg pad {need} before "{lines[i]}" due to "{why}"')
        pads = []
        while need > 0:
            c = min(need, 16); pads.append(f's_nop {c-1}'); need -= c
        lines = lines[:i] + pads + lines[i:]
    raise RuntimeError('hazard pass did not converge')

def kernel_desc(name, vgpr, sgpr, accum=None, wg_y=False, wg_z=False):
    if accum is None:
        accum = (vgpr + 3) // 4 * 4
    s = f""".section .rodata,"a"
.p2align 6
.amdhsa_kernel {name}
  .amdhsa_next_free_vgpr {vgpr}
  .amdhsa_next_free_sgpr {sgpr}
  .amdhsa_accum_offset {accum}
  .amdhsa_group_segment_fixed_size 0
  .amdhsa_kernarg_size 136
  .amdhsa_user_sgpr_count 2
  .amdhsa_user_sgpr_kernarg_segment_ptr 1
  .amdhsa_system_sgpr_workgroup_id_x 1
"""
    if wg_y:
        s += "  .amdhsa_system_sgpr_workgroup_id_y 1\n"
    if wg_z:
        s += "  .amdhsa_system_sgpr_workgroup_id_z 1\n"
    s += "  .amdhsa_float_denorm_mode_32 3\n  .amdhsa_float_denorm_mode_16_64 3\n"
    s += ".end_amdhsa_kernel\n"
    return s

def kernel_head(name):
    return f".text\n.globl {name}\n.p2align 8\n.type {name},@function\n{name}:\n"

HEADER = """; Kernarg layout (136 bytes, ptrs only, base s[0:1]):
"""

def build_file(launches, kernels):
    s = HEADER
    for name, g, b, lds in launches:
        s += f"; @launch kernel={name} grid=({g[0]},{g[1]},{g[2]}) block=({b[0]},{b[1]},{b[2]}) lds={lds}\n"
    s += '.amdgcn_target "amdgcn-amd-amdhsa--gfx950"\n'
    for k in kernels:
        s += kernel_head(k['name'])
        for l in k['lines']:
            if l.endswith(':') and not l.startswith(';'):
                s += l + '\n'
            else:
                s += '    ' + l + '\n'
    for k in kernels:
        s += kernel_desc(k['name'], k['vgpr'], k['sgpr'], k.get('accum'), k.get('wg_y', False))
    return s
```

```python
import sys
from asmlib import *

ARG = dict(x=0, lre=8, lim=16, bre=24, bim=32, cre=40, cim=48, logdt=56, dskip=64, wg=80, wu=88, wd=96, gw=104, out=112, dbg=120, ws=128)
WS = dict(wgT=0x0, wuT=0x200000, wdT=0x400000, bure=0x600000, buim=0xA00000, hh=0xE00000, hre=0x1400000, him=0x1600000, gate=0x1800000)

def srd_arg(p, d, name, nbytes):
    p(f's_load_dwordx2 s[{d}:{d+1}], s[0:1], {ARG[name]}')
    p(f's_mov_b32 s{d+2}, {nbytes}')
    p(f's_mov_b32 s{d+3}, 0x20000')

def srd_ws(p, d, wsreg, name, nbytes):
    p(f's_add_u32 s{d}, s{wsreg}, {WS[name]}')
    p(f's_addc_u32 s{d+1}, s{wsreg+1}, 0')
    p(f's_mov_b32 s{d+2}, {nbytes}')
    p(f's_mov_b32 s{d+3}, 0x20000')

def k_transpose(name, pairs, R, C, gx):
    p = Prog()
    p(f's_cmp_ge_u32 s2, {gx}')
    p(f's_cbranch_scc1 L_{name}_end')
    p(f's_load_dwordx2 s[4:5], s[0:1], {ARG["ws"]}')
    for i, (src, dst) in enumerate(pairs):
        srd_arg(p, 8 + 8 * i, src, R * C * 2)
    p('s_waitcnt lgkmcnt(0)')
    for i, (src, dst) in enumerate(pairs):
        srd_ws(p, 12 + 8 * i, 4, dst, R * C * 2)
    p('s_lshl_b32 s6, s2, 8')
    p('v_add_u32 v1, s6, v0')
    p(f'v_cmp_gt_u32 vcc, {C}, v1')
    p('s_and_saveexec_b64 s[40:41], vcc')
    p(f's_cbranch_execz L_{name}_end')
    p(f's_mul_i32 s7, s3, {8 * C * 2}')
    p('v_lshlrev_b32 v2, 1, v1')
    p('v_add_u32 v2, s7, v2')
    p(f's_mov_b32 s42, {R * 2}')
    p('v_mul_lo_u32 v3, s42, v1')
    p('s_lshl_b32 s43, s3, 4')
    p('v_add_u32 v3, s43, v3')
    for i, (src, dst) in enumerate(pairs):
        for j in range(8):
            p(f's_mov_b32 s44, {j * C * 2}')
            p(f'buffer_load_ushort v{8 + j}, v2, s[{8+8*i}:{11+8*i}], s44 offen')
        p('s_waitcnt vmcnt(0)')
        for j in range(4):
            p(f'v_lshl_or_b32 v{20 + j}, v{9 + 2*j}, 16, v{8 + 2*j}')
        p(f'buffer_store_dwordx4 v[20:23], v3, s[{12+8*i}:{15+8*i}], 0 offen')
        p('s_waitcnt vmcnt(0)')
    p.label(f'L_{name}_end')
    p('s_endpgm')
    return dict(name=name, lines=pad_hazards(p.lines), vgpr=32, sgpr=48, wg_y=True)

def bf16round(p, dst, src):
    p(f'v_cvt_pk_bf16_f32 v{dst}, v{src}, v{src}')
    p(f'v_and_b32 v{dst}, 0xffff0000, v{dst}')

def k_gate(name):
    p = Prog()
    p('s_cmp_ge_u32 s2, 512')
    p(f's_cbranch_scc1 L_{name}_end')
    p(f's_load_dwordx2 s[4:5], s[0:1], {ARG["ws"]}')
    srd_arg(p, 8, 'x', 2048 * 512 * 2)
    srd_arg(p, 12, 'gw', 1024)
    p('s_waitcnt lgkmcnt(0)')
    srd_ws(p, 16, 4, 'gate', 2048 * 8)
    p('v_lshrrev_b32 v1, 6, v0')
    p('s_lshl_b32 s6, s2, 2')
    p('v_add_u32 v1, s6, v1')
    p('v_and_b32 v2, 63, v0')
    p('v_lshlrev_b32 v2, 4, v2')
    p('v_lshl_add_u32 v3, v1, 10, v2')
    p('buffer_load_dwordx4 v[8:11], v3, s[8:11], 0 offen')
    p('buffer_load_dwordx4 v[12:15], v2, s[12:15], 0 offen')
    p('s_waitcnt vmcnt(0)')
    p('v_mov_b32 v20, 0')
    for j in range(4):
        p(f'v_lshlrev_b32 v16, 16, v{8+j}')
        p(f'v_lshlrev_b32 v17, 16, v{12+j}')
        p(f'v_and_b32 v18, 0xffff0000, v{8+j}')
        p(f'v_and_b32 v19, 0xffff0000, v{12+j}')
        p('v_mul_f32 v16, v16, v17')
        p('v_mul_f32 v18, v18, v19')
        bf16round(p, 16, 16); bf16round(p, 18, 18)
        p('v_add_f32 v20, v20, v16')
        p('v_add_f32 v20, v20, v18')
    for off in (0x041F, 0x081F, 0x101F, 0x201F, 0x401F):
        p(f'ds_swizzle_b32 v21, v20 offset:{off}')
        p('s_waitcnt lgkmcnt(0)')
        p('v_add_f32 v20, v20, v21')
    p('v_readlane_b32 s20, v20, 32')
    p('v_add_f32 v20, s20, v20')
    bf16round(p, 20, 20)
    p('v_mul_f32 v20, 0xbfb8aa3b, v20')
    p('v_exp_f32 v20, v20')
    p('v_add_f32 v20, 1.0, v20')
    p('v_rcp_f32 v20, v20')
    bf16round(p, 20, 20)
    p('v_sub_f32 v21, 1.0, v20')
    bf16round(p, 21, 21)
    p('v_lshlrev_b32 v4, 2, v1')
    p('v_cmp_eq_u32 vcc, 0, v2')
    p('s_and_saveexec_b64 s[40:41], vcc')
    p('buffer_store_dword v20, v4, s[16:19], 0 offen')
    p('s_movk_i32 s21, 0x2000')
    p('buffer_store_dword v21, v4, s[16:19], s21 offen')
    p.label(f'L_{name}_end')
    p('s_endpgm')
    return dict(name=name, lines=pad_hazards(p.lines), vgpr=32, sgpr=48)

def k_g1(name):
    p = Prog()
    p('s_cmp_ge_u32 s2, 59')
    p(f's_cbranch_scc1 L_{name}_end')
    p(f's_load_dwordx2 s[4:5], s[0:1], {ARG["ws"]}')
    srd_arg(p, 8, 'x', 2048 * 512 * 2)
    srd_arg(p, 12, 'bre', 512 * 512 * 2)
    srd_arg(p, 16, 'bim', 512 * 512 * 2)
    p('s_waitcnt lgkmcnt(0)')
    p('s_mov_b32 s6, s2')
    p('s_cmp_lt_u32 s2, 16')
    p(f's_cbranch_scc1 L_{name}_ssm')
    srd_ws(p, 12, 4, 'wgT', 1376 * 512 * 2)
    srd_ws(p, 16, 4, 'wuT', 1376 * 512 * 2)
    p('s_sub_u32 s6, s2, 16')
    p.label(f'L_{name}_ssm')
    p('v_and_b32 v1, 31, v0')
    p('v_lshrrev_b32 v2, 5, v0')
    p('s_lshl_b32 s7, s3, 5')
    p('s_lshl_b32 s20, s6, 5')
    p('v_add_u32 v3, s7, v1')
    p('v_lshlrev_b32 v3, 10, v3')
    p('v_lshl_add_u32 v3, v2, 4, v3')
    p('v_add_u32 v4, s20, v1')
    p('v_lshlrev_b32 v4, 10, v4')
    p('v_lshl_add_u32 v4, v2, 4, v4')
    for r in range(32):
        p(f'v_mov_b32 v{32+r}, 0')
    p('s_mov_b32 s21, 0')
    p.label(f'L_{name}_k')
    p('buffer_load_dwordx4 v[8:11], v3, s[8:11], s21 offen')
    p('buffer_load_dwordx4 v[12:15], v4, s[12:15], s21 offen')
    p('buffer_load_dwordx4 v[16:19], v4, s[16:19], s21 offen')
    p('s_waitcnt vmcnt(0)')
    p('v_mfma_f32_32x32x16_bf16 v[32:47], v[8:11], v[12:15], v[32:47]')
    p('v_mfma_f32_32x32x16_bf16 v[48:63], v[8:11], v[16:19], v[48:63]')
    p('s_add_u32 s21, s21, 32')
    p('s_cmp_lt_u32 s21, 1024')
    p(f's_cbranch_scc1 L_{name}_k')
    p('s_nop 15')
    p('v_lshl_add_u32 v5, v2, 2, s7')
    p('v_add_u32 v6, s20, v1')
    p('s_cmp_lt_u32 s2, 16')
    p(f's_cbranch_scc0 L_{name}_ffn')
    srd_ws(p, 24, 4, 'bure', 2048 * 512 * 4)
    srd_ws(p, 28, 4, 'buim', 2048 * 512 * 4)
    p('v_lshlrev_b32 v7, 11, v5')
    p('v_lshl_add_u32 v7, v6, 2, v7')
    for r in range(16):
        row = (r & 3) + 8 * (r >> 2)
        p(f's_mov_b32 s22, {row * 2048}')
        p(f'buffer_store_dword v{32+r}, v7, s[24:27], s22 offen')
        p(f'buffer_store_dword v{48+r}, v7, s[28:31], s22 offen')
    p('s_endpgm')
    p.label(f'L_{name}_ffn')
    srd_ws(p, 24, 4, 'hh', 2048 * 1376 * 2)
    p('s_movk_i32 s22, 2752')
    p('v_mul_lo_u32 v7, s22, v5')
    p('v_lshl_add_u32 v7, v6, 1, v7')
    for r in range(16):
        row = (r & 3) + 8 * (r >> 2)
        bf16round(p, 32 + r, 32 + r); bf16round(p, 48 + r, 48 + r)
        p(f'v_mul_f32 v{32+r}, v{32+r}, v{48+r}')
        p(f'v_cvt_pk_bf16_f32 v{32+r}, v{32+r}, v{32+r}')
        p(f's_mov_b32 s22, {row * 2752}')
        p(f'buffer_store_short v{32+r}, v7, s[24:27], s22 offen')
    p.label(f'L_{name}_end')
    p('s_endpgm')
    return dict(name=name, lines=pad_hazards(p.lines), vgpr=64, sgpr=48, wg_y=True)

def lam_coef(p, vre, vim, vdt, a, b, cr, ci, t0, t1, t2, t3):
    p(f'v_mul_f32 v{vdt}, 0x3fb8aa3b, v{vdt}')
    p(f'v_exp_f32 v{vdt}, v{vdt}')
    bf16round(p, vdt, vdt)
    p(f'v_mul_f32 v{t0}, v{vdt}, v{vre}')
    p(f'v_mul_f32 v{t1}, v{vdt}, v{vim}')
    p(f'v_mul_f32 v{t0}, 0x3fb8aa3b, v{t0}')
    p(f'v_exp_f32 v{t0}, v{t0}')
    p(f'v_mul_f32 v{t1}, 0.15915494, v{t1}')
    p(f'v_rndne_f32 v{t2}, v{t1}')
    p(f'v_sub_f32 v{t1}, v{t1}, v{t2}')
    p(f'v_cos_f32 v{t2}, v{t1}')
    p(f'v_sin_f32 v{t3}, v{t1}')
    p(f'v_mul_f32 v{a}, v{t0}, v{t2}')
    p(f'v_mul_f32 v{b}, v{t0}, v{t3}')
    p(f'v_add_f32 v{t0}, -1.0, v{a}')
    p(f'v_mul_f32 v{t1}, v{vre}, v{vre}')
    p(f'v_fmac_f32 v{t1}, v{vim}, v{vim}')
    p(f'v_rcp_f32 v{t1}, v{t1}')
    p(f'v_mul_f32 v{cr}, v{t0}, v{vre}')
    p(f'v_fmac_f32 v{cr}, v{b}, v{vim}')
    p(f'v_mul_f32 v{ci}, v{b}, v{vre}')
    p(f'v_fma_f32 v{ci}, -v{t0}, v{vim}, v{ci}')
    p(f'v_mul_f32 v{cr}, v{cr}, v{t1}')
    p(f'v_mul_f32 v{ci}, v{ci}, v{t1}')

def k_scan(name):
    U = 32
    p = Prog()
    p('s_cmp_ge_u32 s2, 8')
    p(f's_cbranch_scc1 L_{name}_end')
    p(f's_load_dwordx2 s[4:5], s[0:1], {ARG["ws"]}')
    srd_arg(p, 8, 'lre', 1024)
    srd_arg(p, 12, 'lim', 1024)
    srd_arg(p, 16, 'logdt', 1024)
    p('s_waitcnt lgkmcnt(0)')
    srd_ws(p, 20, 4, 'bure', 2048 * 512 * 4)
    srd_ws(p, 24, 4, 'buim', 2048 * 512 * 4)
    srd_ws(p, 28, 4, 'hre', 2048 * 512 * 2)
    srd_ws(p, 32, 4, 'him', 2048 * 512 * 2)
    p('s_lshl_b32 s6, s2, 6')
    p('v_add_u32 v1, s6, v0')
    p('v_lshlrev_b32 v2, 1, v1')
    p('v_lshlrev_b32 v3, 2, v1')
    p('buffer_load_ushort v4, v2, s[8:11], 0 offen')
    p('buffer_load_ushort v5, v2, s[12:15], 0 offen')
    p('buffer_load_ushort v6, v2, s[16:19], 0 offen')
    p('s_waitcnt vmcnt(0)')
    for r in (4, 5, 6):
        p(f'v_lshlrev_b32 v{r}, 16, v{r}')
    lam_coef(p, 4, 5, 6, 8, 9, 10, 11, 12, 13, 14, 15)
    p('v_mov_b32 v16, 0')
    p('v_mov_b32 v17, 0')
    p('s_mov_b32 s36, 0')
    p.label(f'L_{name}_t')
    for j in range(U):
        p(f's_add_u32 s37, s36, {j}')
        p('s_lshl_b32 s37, s37, 11')
        p(f'buffer_load_dword v{32+j}, v3, s[20:23], s37 offen')
        p(f'buffer_load_dword v{64+j}, v3, s[24:27], s37 offen')
    p('s_waitcnt vmcnt(0)')
    for j in range(U):
        p(f'v_mul_f32 v18, v10, v{32+j}')
        p(f'v_fma_f32 v18, -v11, v{64+j}, v18')
        p(f'v_mul_f32 v19, v10, v{64+j}')
        p(f'v_fmac_f32 v19, v11, v{32+j}')
        p('v_fmac_f32 v18, v8, v16')
        p('v_fma_f32 v18, -v9, v17, v18')
        p('v_fmac_f32 v19, v8, v17')
        p('v_fmac_f32 v19, v9, v16')
        p('v_mov_b32 v16, v18')
        p('v_mov_b32 v17, v19')
        p(f'v_cvt_pk_bf16_f32 v{32+j}, v16, v16')
        p(f'v_cvt_pk_bf16_f32 v{64+j}, -v17, -v17')
        p(f's_add_u32 s37, s36, {j}')
        p('s_lshl_b32 s37, s37, 10')
        p(f'buffer_store_short v{32+j}, v2, s[28:31], s37 offen')
        p(f'buffer_store_short v{64+j}, v2, s[32:35], s37 offen')
    p('s_waitcnt vmcnt(0)')
    p(f's_add_u32 s36, s36, {U}')
    p('s_cmp_lt_u32 s36, 2048')
    p(f's_cbranch_scc1 L_{name}_t')
    p.label(f'L_{name}_end')
    p('s_endpgm')
    return dict(name=name, lines=pad_hazards(p.lines), vgpr=96, sgpr=48)

def k_g2(name, scale=None):
    p = Prog()
    p('s_cmp_ge_u32 s2, 16')
    p(f's_cbranch_scc1 L_{name}_end')
    p(f's_load_dwordx2 s[4:5], s[0:1], {ARG["ws"]}')
    srd_arg(p, 8, 'cre', 512 * 512 * 2)
    srd_arg(p, 12, 'cim', 512 * 512 * 2)
    srd_arg(p, 16, 'x', 2048 * 512 * 2)
    srd_arg(p, 20, 'dskip', 1024)
    srd_arg(p, 24, 'out', 2048 * 512 * 4)
    p('s_waitcnt lgkmcnt(0)')
    srd_ws(p, 28, 4, 'hre', 2048 * 512 * 2)
    srd_ws(p, 32, 4, 'him', 2048 * 512 * 2)
    srd_ws(p, 36, 4, 'hh', 2048 * 1376 * 2)
    srd_ws(p, 40, 4, 'wdT', 512 * 1376 * 2)
    srd_ws(p, 44, 4, 'gate', 2048 * 8)
    p('v_and_b32 v1, 31, v0')
    p('v_lshrrev_b32 v2, 5, v0')
    p('s_lshl_b32 s7, s3, 5')
    p('s_lshl_b32 s6, s2, 5')
    p('v_add_u32 v3, s7, v1')
    p('v_add_u32 v4, s6, v1')
    p('s_movk_i32 s50, 2752')
    p('v_mul_lo_u32 v5, s50, v3')
    p('v_mul_lo_u32 v6, s50, v4')
    p('v_lshl_add_u32 v5, v2, 4, v5')
    p('v_lshl_add_u32 v6, v2, 4, v6')
    p('v_lshlrev_b32 v3, 10, v3')
    p('v_lshl_add_u32 v3, v2, 4, v3')
    p('v_lshlrev_b32 v4, 10, v4')
    p('v_lshl_add_u32 v4, v2, 4, v4')
    for r in range(32):
        p(f'v_mov_b32 v{32+r}, 0')
    p('s_mov_b32 s51, 0')
    p.label(f'L_{name}_k')
    p('buffer_load_dwordx4 v[8:11], v3, s[28:31], s51 offen')
    p('buffer_load_dwordx4 v[12:15], v4, s[8:11], s51 offen')
    p('buffer_load_dwordx4 v[16:19], v3, s[32:35], s51 offen')
    p('buffer_load_dwordx4 v[20:23], v4, s[12:15], s51 offen')
    p('s_waitcnt vmcnt(0)')
    p('v_mfma_f32_32x32x16_bf16 v[32:47], v[8:11], v[12:15], v[32:47]')
    p('v_mfma_f32_32x32x16_bf16 v[32:47], v[16:19], v[20:23], v[32:47]')
    p('s_add_u32 s51, s51, 32')
    p('s_cmp_lt_u32 s51, 1024')
    p(f's_cbranch_scc1 L_{name}_k')
    p('s_mov_b32 s51, 0')
    p.label(f'L_{name}_k2')
    p('buffer_load_dwordx4 v[8:11], v5, s[36:39], s51 offen')
    p('buffer_load_dwordx4 v[12:15], v6, s[40:43], s51 offen')
    p('s_waitcnt vmcnt(0)')
    p('v_mfma_f32_32x32x16_bf16 v[48:63], v[8:11], v[12:15], v[48:63]')
    p('s_add_u32 s51, s51, 32')
    p('s_cmp_lt_u32 s51, 2752')
    p(f's_cbranch_scc1 L_{name}_k2')
    p('s_nop 15')
    p('v_lshl_add_u32 v5, v2, 2, s7')
    p('v_add_u32 v6, s6, v1')
    p('v_lshlrev_b32 v7, 1, v6')
    p('buffer_load_ushort v8, v7, s[20:23], 0 offen')
    p('v_lshl_add_u32 v9, v5, 10, v7')
    p('v_lshlrev_b32 v10, 2, v5')
    p('v_lshlrev_b32 v11, 1, v9')
    for r in range(16):
        row = (r & 3) + 8 * (r >> 2)
        p(f's_mov_b32 s52, {row * 1024}')
        p(f'buffer_load_ushort v{64+r}, v9, s[16:19], s52 offen')
        p(f'buffer_load_dword v{80+r}, v10, s[44:47], 0 offen offset:{row*4}')
        p(f's_mov_b32 s52, {row * 4 + 8192}')
        p(f'buffer_load_dword v{96+r}, v10, s[44:47], s52 offen')
    p('s_waitcnt vmcnt(0)')
    p('v_lshlrev_b32 v8, 16, v8')
    for r in range(16):
        row = (r & 3) + 8 * (r >> 2)
        p(f'v_lshlrev_b32 v{64+r}, 16, v{64+r}')
        p(f'v_mul_f32 v{64+r}, v{64+r}, v8')
        bf16round(p, 64 + r, 64 + r)
        p(f'v_fma_f32 v{32+r}, 2.0, v{32+r}, v{64+r}')
        bf16round(p, 48 + r, 48 + r)
        p(f'v_mul_f32 v{48+r}, v{48+r}, v{96+r}')
        bf16round(p, 48 + r, 48 + r)
        p(f'v_mul_f32 v{32+r}, v{32+r}, v{80+r}')
        p(f'v_add_f32 v{32+r}, v{32+r}, v{48+r}')
        if scale is not None:
            p(f'v_mul_f32 v{32+r}, {scale}, v{32+r}')
        p(f's_mov_b32 s52, {row * 2048}')
        p(f'buffer_store_dword v{32+r}, v11, s[24:27], s52 offen')
    p.label(f'L_{name}_end')
    p('s_endpgm')
    return dict(name=name, lines=pad_hazards(p.lines), vgpr=112, sgpr=56, wg_y=True)

def k_empty(name):
    p = Prog()
    p('s_endpgm')
    return dict(name=name, lines=p.lines, vgpr=8, sgpr=16)

if __name__ == '__main__':
    import struct
    nempty = int(sys.argv[2]) if len(sys.argv) > 2 else 0
    scale = None
    if len(sys.argv) > 3:
        scale = hex(struct.unpack('<I', struct.pack('<f', float(sys.argv[3])))[0])
    ks = [k_transpose('tgu_kernel', [('wg', 'wgT'), ('wu', 'wuT')], 512, 1376, 6),
          k_transpose('td_kernel', [('wd', 'wdT')], 1376, 512, 2),
          k_gate('gate_kernel'), k_g1('g1_kernel'), k_scan('scan_kernel'), k_g2('g2_kernel', scale)]
    launches = [('tgu_kernel', (6, 64, 1), (256, 1, 1), 0), ('td_kernel', (2, 172, 1), (256, 1, 1), 0),
                ('gate_kernel', (512, 1, 1), (256, 1, 1), 0), ('g1_kernel', (59, 64, 1), (64, 1, 1), 0),
                ('scan_kernel', (8, 1, 1), (64, 1, 1), 0), ('g2_kernel', (16, 64, 1), (64, 1, 1), 0)]
    if nempty:
        ks.append(k_empty('empty_kernel'))
        launches += [('empty_kernel', (256, 1, 1), (256, 1, 1), 0)] * nempty
    open(sys.argv[1], 'w').write(build_file(launches, ks))
```

```python
import sys
from v0 import *

def k_code(name, kb, warm=False):
    p = Prog()
    if warm:
        p('s_getpc_b64 s[8:9]')
        p('s_and_b32 s8, s8, 0xffffff00')
        p(f's_mov_b32 s10, {kb*1024}')
        p('s_mov_b32 s11, 0x20000')
        p('v_lshlrev_b32 v1, 7, v0')
        p('buffer_load_dword v2, v1, s[8:11], 0 offen')
        p('s_waitcnt vmcnt(0)')
    for i in range(kb * 1024 // 8):
        p(f'v_add3_u32 v{4 + (i % 8)}, v0, v0, v0')
    p('s_endpgm')
    return dict(name=name, lines=p.lines, vgpr=16, sgpr=16)

kb = int(sys.argv[2]); reps = int(sys.argv[3]); warm = int(sys.argv[4])
ks = [k_code('code_kernel', kb, warm),
      k_transpose('tgu_kernel', [('wg', 'wgT'), ('wu', 'wuT')], 512, 1376, 6),
      k_transpose('td_kernel', [('wd', 'wdT')], 1376, 512, 2),
      k_gate('gate_kernel'), k_g1('g1_kernel'), k_scan('scan_kernel'), k_g2('g2_kernel', None)]
launches = [('code_kernel', (256,1,1), (256,1,1), 0)] * reps + [('tgu_kernel', (6, 64, 1), (256, 1, 1), 0), ('td_kernel', (2, 172, 1), (256, 1, 1), 0),
            ('gate_kernel', (512, 1, 1), (256, 1, 1), 0), ('g1_kernel', (59, 64, 1), (64, 1, 1), 0),
            ('scan_kernel', (8, 1, 1), (64, 1, 1), 0), ('g2_kernel', (16, 64, 1), (64, 1, 1), 0)]
open(sys.argv[1], 'w').write(build_file(launches, ks))
```
